```python
import torch

def _softmax(x, axis=-1):
    return torch.softmax(x, dim=axis)
def _gelu(x):
    return torch.nn.functional.gelu(x, approximate="tanh")
def _silu(x):
    return torch.nn.functional.silu(x)
def _sigmoid(x):
    return torch.sigmoid(x)
def _layernorm(x, axis=-1, eps=1e-5):
    m = x.mean(dim=axis, keepdim=True)
    v = x.var(dim=axis, keepdim=True, unbiased=False)
    return (x - m) / torch.sqrt(v + eps)
def _scatter_add(tgt, idx, src, axis=0):
    return tgt.clone().index_add_(axis, idx, src)
def _segment_sum(src, seg, n):
    out = torch.zeros((n,) + src.shape[1:], dtype=src.dtype)
    return out.index_add_(0, seg, src)
def _pad(x, pw):
    flat = tuple(v for pair in reversed(pw) for v in pair)
    return torch.nn.functional.pad(x, flat)

kernel_name = 'standalone__linear_attn_elu__prompt'

def setup_inputs():

    _w = (lambda a: (lambda t: t.to(torch.bfloat16) if t.is_floating_point() else t)(torch.as_tensor(a)))
    B, H, S, D = 1, 32, 2048, 128
    return {
        "q": _w((lambda *s: torch.randn(*s, dtype=torch.bfloat16) * 0.05)(B, H, S, D)),
        "k": _w((lambda *s: torch.randn(*s, dtype=torch.bfloat16) * 0.05)(B, H, S, D)),
        "v": _w((lambda *s: torch.randn(*s, dtype=torch.bfloat16) * 0.05)(B, H, S, D)),
    }

def reference(q, k, v):
    phi_q = torch.where(q > 0, q + 1, torch.exp(q)) + 1e-6
    phi_k = torch.where(k > 0, k + 1, torch.exp(k)) + 1e-6
    kv = torch.einsum("bhsd,bhse->bhde", phi_k, v)
    z = torch.einsum("bhsd->bhd", phi_k)
    num = torch.einsum("bhqd,bhde->bhqe", phi_q, kv)
    den = torch.einsum("bhqd,bhd->bhq", phi_q, z)[..., None] + 1e-6
    return num / den
```

```python
KN = "standalone__linear_attn_elu__prompt_kernel"
class Asm:
    def __init__(self):
        self.lines = []
        self.nlab = 0
    def __call__(self, s, *more):
        for x in (s,) + more:
            for l in x.split("\n"):
                l = l.strip()
                if l: self.lines.append(l if l.endswith(":") else "    " + l)
    def c(self, s): self.lines.append("    ; " + s)
    def label(self, base="L"):
        self.nlab += 1
        return f"{base}_{self.nlab}"
    def text(self): return "\n".join(self.lines)
HEADER = """; Kernarg layout for this problem (48 bytes, ptrs only, base s[0:1]):
"""
def wrap(body, grid, block, lds, vgpr=256, sgpr=102, accum=None, notes="", name=KN):
    if accum is None: accum = (min(vgpr, 256) + 3) // 4 * 4
    return (HEADER + notes + f"; @launch grid=({grid},1,1) block=({block},1,1) lds={lds}\n"
      + '.amdgcn_target "amdgcn-amd-amdhsa--gfx950"\n.text\n'
      + f".globl {name}\n.p2align 8\n.type {name},@function\n{name}:\n" + body + "\n"
      + f""".section .rodata,"a"
.p2align 6
.amdhsa_kernel {name}
  .amdhsa_next_free_vgpr {vgpr}
  .amdhsa_next_free_sgpr {sgpr}
  .amdhsa_accum_offset {accum}
  .amdhsa_group_segment_fixed_size 0
  .amdhsa_kernarg_size 48
  .amdhsa_user_sgpr_count 2
  .amdhsa_user_sgpr_kernarg_segment_ptr 1
  .amdhsa_system_sgpr_workgroup_id_x 1
.end_amdhsa_kernel
""")
```

```python
import sys
from asmlib import *

NOTES = """; Linear attention with the elu+1 feature map, one launch, 256 workgroups of 8 waves.
"""

def gen(A_=5, stamps=False, qe="P0", ql="P2", qstage=15, rot=0, outflag="", phi_first=False, prio=False,
        spin=1 << 20, hs_stage=12):
    A = Asm()
    N = 6
    AH = A_
    KR, VR, QR = 0, 49152, 98304
    XR = 0
    KVI = 49152
    ZI = KVI + 33280
    ZWS = 0x200000
    sK, sV, sQ, sO, sD, sW = 8, 12, 16, 20, 24, 28
    sw, shead, sj, srow, sld, sst, st0, st1 = 32, 33, 34, 35, 36, 37, 38, 39
    sl2e, seps, smask, sdelta, srd, searly, sqoff, sqlds = 40, 41, 42, 43, 44, 45, 46, 47
    spub, sgat, szpub, szgat, sspin = 48, 49, 50, 51, 52
    szm = 54
    sout = 56
    swrap = 57
    nst = [0]
    def stamp(i):
        if stamps: A(f"s_memrealtime s[{60+2*i}:{61+2*i}]")
    vlane, vdK, vdV, vKa = 1, 2, 3, 4
    vVa = [5, 6, 7, 8]
    vl16 = 9
    vq = [10, 11, 12, 13]
    vqa = [14, 15, 16, 17]
    vz = 18
    vzg = 19
    vkw = 20
    vzw = 21
    vbr = 22
    vzr = 23
    vo = 24
    vt = [25, 26, 27]
    vones = 28
    vacc = 32
    vkr = 52
    vka = 56
    vvb = 60
    vx = 76
    ve = 84
    vhs = 92
    vg = 96
    vqr = 136
    vb = 168
    vzb = 96
    vo2 = 200
    vn = 32
    vden = 112

    A("s_cmp_ge_u32 s2, 256", "s_cbranch_scc1 L_end")
    stamp(0)
    for srd_, off in ((sK, 8), (sV, 16), (sW, 40), (sQ, 0), (sO, 24), (sD, 32)):
        A(f"s_load_dwordx2 s[{srd_}:{srd_+1}], s[0:1], {off}")
    A(f"v_lshrrev_b32 v{vt[0]}, 6, v0", f"v_and_b32 v{vlane}, 63, v0", f"v_readfirstlane_b32 s{sw}, v{vt[0]}")
    A(f"s_and_b32 s{st0}, s2, 7", f"s_lshr_b32 s{st1}, s2, 3", f"s_lshl_b32 s{st0}, s{st0}, 5", f"s_add_u32 s{st0}, s{st0}, s{st1}")
    A(f"s_lshr_b32 s{shead}, s{st0}, 3", f"s_and_b32 s{sj}, s{st0}, 7")
    for r_, nrec in ((sK, 0x1000000), (sV, 0x1000000), (sW, 0x400000), (sQ, 0x1000000), (sO, 0x1000000), (sD, 256)):
        A(f"s_mov_b32 s{r_+2}, {hex(nrec)}", f"s_mov_b32 s{r_+3}, 0x20000")
    A(f"v_lshrrev_b32 v{vt[0]}, 3, v{vlane}", f"v_and_b32 v{vt[1]}, 6, v{vt[0]}", f"v_and_b32 v{vt[2]}, 7, v{vlane}",
      f"v_xor_b32 v{vt[1]}, v{vt[1]}, v{vt[2]}", f"v_lshlrev_b32 v{vt[1]}, 4, v{vt[1]}", f"v_lshl_add_u32 v{vdK}, v{vt[0]}, 8, v{vt[1]}")
    A(f"s_lshr_b32 s{st1}, s{st0}, 2", f"s_lshl_b32 s{st1}, s{st1}, 18", f"s_lshl_b32 s{sld}, s{sw}, 11", f"s_add_u32 s{st1}, s{st1}, s{sld}")
    A(f"s_and_b32 s{srow}, s{sj}, 1", f"s_lshl_b32 s{srow}, s{srow}, 7", f"s_add_u32 s{srow}, s{srow}, s{st1}", f"v_add_u32 v{vdV}, s{srow}, v{vdK}")
    A(f"s_and_b32 s{srow}, s{sj}, 2", f"s_lshl_b32 s{srow}, s{srow}, 6", f"s_add_u32 s{srow}, s{srow}, s{st1}", f"v_add_u32 v{vdK}, s{srow}, v{vdK}")
    A(f"s_lshl_b32 s{sld}, s{sw}, 10")
    if rot:
        A(f"s_lshr_b32 s{srow}, s{st0}, 2", f"s_mul_i32 s{srow}, s{srow}, {rot*16384}", f"s_and_b32 s{srow}, s{srow}, 0x3ffff")
    else:
        A(f"s_mov_b32 s{srow}, 0")
    A(f"s_lshl_b32 s{spub}, s{st0}, 13", f"s_add_u32 s{spub}, s{spub}, s{sld}")
    A(f"s_lshl_b32 s{szpub}, s{st0}, 8", f"s_add_u32 s{szpub}, s{szpub}, {hex(ZWS)}")
    A(f"s_lshl_b32 s{sqoff}, s{st0}, 16", f"s_lshl_b32 s{st1}, s{sw}, 13", f"s_add_u32 s{sqoff}, s{sqoff}, s{st1}")
    A(f"s_add_u32 s{sqlds}, s{st1}, {QR}")
    A(f"v_lshlrev_b32 v{vl16}, 4, v{vlane}")
    A(f"s_and_b32 s{st0}, s{sw}, 2", f"s_lshl_b32 s{st0}, s{st0}, 6", f"s_and_b32 s{st1}, s{sw}, 1", f"s_lshl_b32 s{st1}, s{st1}, 4",
      f"s_add_u32 s{st0}, s{st0}, s{st1}", f"s_add_u32 s{szpub}, s{szpub}, s{st0}")
    A(f"v_lshrrev_b32 v{vz}, 4, v{vlane}", f"v_lshlrev_b32 v{vz}, 5, v{vz}")
    A(f"s_cmp_lt_u32 s{sw}, 4", f"s_cselect_b32 s{searly}, 1, 0", f"s_cselect_b32 s{szm}, 0x10001, 0", f"s_cselect_b32 s{szm+1}, 0, 0x10001")
    for i in range(4): A(f"v_mov_b32 v{vones+i}, -1")
    A("s_waitcnt lgkmcnt(0)")
    A(f"buffer_store_dwordx4 v[{vones}:{vones+3}], v{vl16}, s[{sW}:{sW+3}], s{spub} offen sc1")
    A(f"s_mov_b64 exec, s[{szm}:{szm+1}]")
    A(f"buffer_store_dwordx4 v[{vones}:{vones+3}], v{vz}, s[{sW}:{sW+3}], s{szpub} offen sc1")
    A("s_mov_b64 exec, -1")
    def kvload():
        A(f"s_mov_b32 m0, s{sld}", f"s_add_u32 s{st0}, s{sld}, {VR}")
        A(f"buffer_load_dwordx4 v{vdK}, s[{sK}:{sK+3}], s{srow} offen nt lds")
        A(f"s_mov_b32 m0, s{st0}", f"s_add_u32 s{sld}, s{sld}, 8192")
        A(f"buffer_load_dwordx4 v{vdV}, s[{sV}:{sV+3}], s{srow} offen nt lds")
        A(f"s_add_u32 s{srow}, s{srow}, 16384")
        if rot: A(f"s_and_b32 s{srow}, s{srow}, 0x3ffff")
    A(f"s_mov_b32 s{sst}, 0")
    A("L_pro:")
    kvload()
    A(f"s_add_u32 s{sst}, s{sst}, 1", f"s_cmp_lt_u32 s{sst}, {AH}", "s_cbranch_scc1 L_pro")
    stamp(1)
    A(f"s_mov_b32 s{sl2e}, 0x3fb8aa3b", f"s_mov_b32 s{seps}, 0x358637bd", f"s_mov_b32 s{smask}, 0xffff0000")
    A(f"s_mov_b32 s{sst}, 0", f"s_mov_b32 s{srd}, 0", f"s_mov_b32 s{sspin}, 0", f"s_mov_b32 s{swrap}, {-(N-1)*8192}")
    for i in range(4): A(f"v_mov_b32 v{vones+i}, 0x3f803f80")
    for i in range(20): A(f"v_mov_b32 v{vacc+i}, 0")
    t0, t1, t2 = vt
    A(f"v_lshrrev_b32 v{t0}, 2, v{vlane}", f"v_and_b32 v{t1}, 6, v{t0}", f"v_lshlrev_b32 v{t0}, 7, v{t0}")
    A(f"s_lshr_b32 s{st0}, s{sw}, 2", f"s_lshl_b32 s{st1}, s{st0}, 12", f"v_add_u32 v{t0}, s{st1}, v{t0}")
    A(f"s_and_b32 s{st1}, s{sw}, 2", f"s_lshl_b32 s{st1}, s{st1}, 1", f"v_and_b32 v{t2}, 3, v{vlane}", f"v_or_b32 v{t2}, s{st1}, v{t2}",
      f"v_xor_b32 v{t2}, v{t2}, v{t1}", f"v_lshl_add_u32 v{vKa}, v{t2}, 4, v{t0}",
      f"s_and_b32 s{st1}, s{sw}, 1", f"s_lshl_b32 s{st1}, s{st1}, 3", f"v_add_u32 v{vKa}, s{st1}, v{vKa}")
    A(f"v_and_b32 v{t2}, 1, v{vlane}", f"v_lshl_add_u32 v{t0}, v{t2}, 3, v{t0}", f"v_add_u32 v{t0}, {VR}, v{t0}")
    A(f"v_bfe_u32 v{t2}, v{vlane}, 1, 1", f"v_xor_b32 v{t1}, v{t1}, v{t2}", f"s_lshl_b32 s{st1}, s{st0}, 2", f"v_xor_b32 v{t1}, s{st1}, v{t1}")
    for t in range(4):
        A(f"v_xor_b32 v{t2}, {2*t}, v{t1}", f"v_lshl_add_u32 v{vVa[t]}, v{t2}, 4, v{t0}")
    A(f"v_lshrrev_b32 v{t0}, 4, v{vlane}", f"v_and_b32 v{t1}, 15, v{vlane}", f"v_xor_b32 v{t2}, v{t0}, v{t1}", f"v_lshlrev_b32 v{t2}, 4, v{t2}")
    A(f"v_lshl_add_u32 v{vq[0]}, v{t0}, 8, v{t2}")
    for i in range(1, 4): A(f"v_xor_b32 v{vq[i]}, {64*i}, v{vq[0]}")
    A(f"v_lshl_add_u32 v{vqa[0]}, v{t1}, 8, v{t2}", f"v_add_u32 v{vqa[0]}, s{sqlds}, v{vqa[0]}")
    for i in range(1, 4): A(f"v_xor_b32 v{vqa[i]}, {64*i}, v{vqa[0]}")
    A(f"v_lshlrev_b32 v{vo}, 10, v{t0}", f"v_lshl_add_u32 v{vo}, v{t1}, 4, v{vo}")
    A(f"v_add_u32 v{vbr}, {KVI}, v{vl16}", f"v_lshlrev_b32 v{vzr}, 4, v{t0}", f"v_add_u32 v{vzr}, {ZI}, v{vzr}")
    A(f"s_lshl_b32 s{sgat}, s{shead}, 16", f"s_lshr_b32 s{st0}, s{sw}, 1", f"s_lshl_b32 s{st1}, s{st0}, 13", f"s_add_u32 s{sgat}, s{sgat}, s{st1}",
      f"s_and_b32 s{st1}, s{sw}, 1", f"s_lshl_b32 s{st1}, s{st1}, 11", f"s_add_u32 s{sgat}, s{sgat}, s{st1}")
    A(f"s_lshl_b32 s{szgat}, s{shead}, 11", f"s_lshl_b32 s{st1}, s{sw}, 7", f"s_add_u32 s{szgat}, s{szgat}, s{st1}", f"s_add_u32 s{szgat}, s{szgat}, {hex(ZWS)}")
    A(f"v_and_b32 v{vzg}, 7, v{vlane}", f"v_lshlrev_b32 v{vzw}, 3, v{vzg}", f"v_lshlrev_b32 v{vzg}, 4, v{vzg}")
    A(f"s_lshr_b32 s{st0}, s{sw}, 2", f"s_lshl_b32 s{st0}, s{st0}, 1", f"s_and_b32 s{st1}, s{sw}, 1", f"s_add_u32 s{st0}, s{st0}, s{st1}")
    A(f"s_lshl_b32 s{st1}, s{st0}, 6", f"s_add_u32 s{st1}, s{st1}, {ZI}", f"v_add_u32 v{vzw}, s{st1}, v{vzw}")
    A(f"s_mul_i32 s{st0}, s{st0}, 8320", f"s_and_b32 s{st1}, s{sw}, 2", f"s_lshl_b32 s{st1}, s{st1}, 6", f"s_add_u32 s{st0}, s{st0}, s{st1}",
      f"s_add_u32 s{st0}, s{st0}, {KVI}")
    A(f"v_and_b32 v{t2}, 7, v{vlane}", f"v_mul_u32_u24 v{t2}, 1040, v{t2}", f"v_lshl_add_u32 v{t2}, v{t0}, 8, v{t2}",
      f"v_bfe_u32 v{t1}, v{vlane}, 3, 1", f"v_lshl_add_u32 v{t2}, v{t1}, 4, v{t2}", f"v_add_u32 v{vkw}, s{st0}, v{t2}")

    def phi8(src, dst):
        for i in range(4):
            A(f"v_lshlrev_b32 v{vx+2*i}, 16, v{src+i}", f"v_and_b32 v{vx+2*i+1}, s{smask}, v{src+i}")
        for i in range(8): A(f"v_mul_f32 v{ve+i}, s{sl2e}, v{vx+i}")
        for i in range(8):
            A(f"v_exp_f32 v{ve+i}, v{ve+i} clamp", f"v_max_f32 v{vx+i}, s{seps}, v{vx+i}")
        for i in range(8): A(f"v_add_f32 v{vx+i}, v{ve+i}, v{vx+i}")
        for i in range(4): A(f"v_cvt_pk_bf16_f32 v{dst+i}, v{vx+2*i}, v{vx+2*i+1}")

    def qload():
        for h in range(2):
            if h == 0:
                A(f"s_mov_b32 m0, s{sqlds}", f"s_add_u32 s{st0}, s{sqlds}, 4096")
                so = sqoff
            else:
                A(f"s_mov_b32 m0, s{st0}", f"s_add_u32 s{st1}, s{sqoff}, 4096")
                so = st1
            for i in range(4):
                A(f"buffer_load_dwordx4 v{vq[i]}, s[{sQ}:{sQ+3}], s{so} offen offset:{1024*i} nt lds")
    def qload_at(pos):
        e, l = qe == pos, ql == pos
        if e and l: qload()
        elif e or l:
            lab = A.label("L_q")
            A(f"s_cmp_eq_u32 s{searly}, 1", f"s_cbranch_scc{0 if e else 1} {lab}")
            qload()
            A(f"{lab}:")

    A("L_top:", f"s_waitcnt vmcnt({2*(AH-1)})")
    A("L_body:", "s_barrier")
    A(f"ds_read_b64_tr_b16 v[{vkr}:{vkr+1}], v{vKa}", f"ds_read_b64_tr_b16 v[{vkr+2}:{vkr+3}], v{vKa} offset:2048")
    for t in range(4):
        A(f"ds_read_b64_tr_b16 v[{vvb+4*t}:{vvb+4*t+1}], v{vVa[t]}", f"ds_read_b64_tr_b16 v[{vvb+4*t+2}:{vvb+4*t+3}], v{vVa[t]} offset:2048")
    A(f"s_cmp_ge_u32 s{sst}, {16-AH}", "s_cbranch_scc1 L_nold")
    kvload()
    A(f"s_cmp_ge_u32 s{sld}, {N*8192}", f"s_cselect_b32 s{st0}, {N*8192}, 0", f"s_sub_u32 s{sld}, s{sld}, s{st0}")
    A(f"s_lshl_b32 s{st0}, s{sw}, 4", f"s_add_u32 s{st0}, s{st0}, s{sst}", f"s_cmp_lg_u32 s{st0}, 1", "s_cbranch_scc1 L_nold")
    A(f"s_lshl_b32 s{st0}, s{shead}, 3", f"s_add_u32 s{st0}, s{st0}, s{sj}", "s_mov_b64 exec, 1")
    A(f"buffer_store_byte v{vones}, v{vlane}, s[{sD}:{sD+3}], s{st0} offen sc1", "s_mov_b64 exec, -1")
    A("L_nold:")
    A(f"s_add_u32 s{srd}, s{srd}, 1", f"s_cmp_eq_u32 s{srd}, {N}", f"s_cselect_b32 s{srd}, 0, s{srd}",
      f"s_cselect_b32 s{sdelta}, s{swrap}, 8192")
    A("s_waitcnt lgkmcnt(8)")
    phi8(vkr, vka)
    A(f"v_add_u32 v{vKa}, s{sdelta}, v{vKa}")
    A(f"v_add_u32 v{vVa[0]}, s{sdelta}, v{vVa[0]}")
    A("s_waitcnt lgkmcnt(0)")
    for t in (2, 3, 4, 0, 1):
        b = vones if t == 4 else vvb + 4*t
        A(f"v_mfma_f32_16x16x32_bf16 v[{vacc+4*t}:{vacc+4*t+3}], v[{vka}:{vka+3}], v[{b}:{b+3}], v[{vacc+4*t}:{vacc+4*t+3}]")
        if t in (2, 3, 4): A(f"v_add_u32 v{vVa[t-1]}, s{sdelta}, v{vVa[t-1]}")
    A(f"s_add_u32 s{sst}, s{sst}, 1", f"s_cmp_le_u32 s{sst}, {16-AH}", "s_cbranch_scc1 L_top")
    extra_e = extra_l = 0
    for s in range(16-AH+1, 16):
        nxt = A.label("L_t")
        A(f"s_cmp_eq_u32 s{sst}, {s}", f"s_cbranch_scc0 {nxt}")
        if s == hs_stage:
            A(f"s_lshl_b32 s{st0}, s{shead}, 3", f"v_mov_b32 v{vt[0]}, 0")
            A(f"buffer_load_dwordx2 v[{vhs}:{vhs+1}], v{vt[0]}, s[{sD}:{sD+3}], s{st0} offen sc1")
            extra_e += 1; extra_l += 1
        base = 2*(15-s)
        if s == qstage:
            qload_at("P0")
            if qe == "P0": extra_e += 8
            if ql == "P0": extra_l += 8
        if extra_e == extra_l:
            A(f"s_waitcnt vmcnt({base+extra_e})", "s_branch L_body")
        else:
            lo, hi = min(extra_e, extra_l), max(extra_e, extra_l)
            A(f"s_waitcnt vmcnt({base+hi})", f"s_cmp_eq_u32 s{searly}, {1 if extra_e == hi else 0}", "s_cbranch_scc1 L_body",
              f"s_waitcnt vmcnt({base+lo})", "s_branch L_body")
        A(f"{nxt}:")
    stamp(2)
    A(f"s_mul_i32 s{st0}, s{sw}, 3072", f"s_xor_b32 s{st1}, s{sw}, 4", f"s_mul_i32 s{st1}, s{st1}, 3072")
    A(f"v_add_u32 v{vt[0]}, s{st0}, v{vl16}", f"v_add_u32 v{vt[1]}, s{st1}, v{vl16}")
    A(f"ds_write_b128 v{vt[0]}, v[{vacc+8}:{vacc+11}]", f"ds_write_b128 v{vt[0]}, v[{vacc+12}:{vacc+15}] offset:1024",
      f"ds_write_b128 v{vt[0]}, v[{vacc+16}:{vacc+19}] offset:2048")
    A("s_waitcnt lgkmcnt(0)", "s_barrier")
    A(f"ds_read_b128 v[{vvb}:{vvb+3}], v{vt[1]}", f"ds_read_b128 v[{vvb+4}:{vvb+7}], v{vt[1]} offset:1024",
      f"ds_read_b128 v[{vvb+8}:{vvb+11}], v{vt[1]} offset:2048")
    A("s_waitcnt lgkmcnt(1)")
    for i in range(8): A(f"v_add_f32 v{vacc+i}, v{vacc+i}, v{vvb+i}")
    for i in range(4): A(f"v_cvt_pk_bf16_f32 v{vka+i}, v{vacc+2*i}, v{vacc+2*i+1}")
    for i in range(4): A(f"v_min_u32 v{vka+i}, -2, v{vka+i}")
    A(f"buffer_store_dwordx4 v[{vka}:{vka+3}], v{vl16}, s[{sW}:{sW+3}], s{spub} offen sc1")
    A("s_waitcnt lgkmcnt(0)")
    for i in range(4): A(f"v_add_f32 v{vkr+i}, v{vacc+16+i}, v{vvb+8+i}")
    for i in range(4): A(f"v_min_u32 v{vkr+i}, -2, v{vkr+i}")
    A(f"s_mov_b64 exec, s[{szm}:{szm+1}]")
    A(f"buffer_store_dwordx4 v[{vkr}:{vkr+3}], v{vz}, s[{sW}:{sW+3}], s{szpub} offen sc1")
    A("s_mov_b64 exec, -1")
    stamp(3)
    ne = 2 + (8 if (qe == "P0" and qstage >= hs_stage) else 0)
    nl = 2 + (8 if (ql == "P0" and qstage >= hs_stage) else 0)
    if ne == nl:
        A(f"s_waitcnt vmcnt({ne})")
    else:
        lab = A.label("L_h")
        A(f"s_waitcnt vmcnt({max(ne,nl)})", f"s_cmp_eq_u32 s{searly}, {1 if ne > nl else 0}", f"s_cbranch_scc1 {lab}", f"s_waitcnt vmcnt({min(ne,nl)})", f"{lab}:")
    A("L_hs:")
    A(f"v_and_b32 v{vt[2]}, v{vhs}, v{vhs+1}", f"v_cmp_ne_u32 vcc, 0x80808080, v{vt[2]}", "s_cbranch_vccnz L_hs_retry")
    qload_at("P1")
    A(f"s_add_u32 s{st0}, s{sgat}, 4096", f"s_add_u32 s{st1}, s{sgat}, 32768", f"s_add_u32 s{sdelta}, s{sgat}, {32768+4096}")
    def gather():
        for rg in range(2):
            for dsl in range(2):
                for r in range(2):
                    so = (sgat, st0, st1, sdelta)[2*r + rg]
                    d = vg + 16*r + 8*rg + 4*dsl
                    A(f"buffer_load_dwordx4 v[{d}:{d+3}], v{vl16}, s[{sW}:{sW+3}], s{so} offen offset:{1024*dsl} sc1")
        for r in range(2):
            A(f"buffer_load_dwordx4 v[{vg+32+4*r}:{vg+35+4*r}], v{vzg}, s[{sW}:{sW+3}], s{szgat} offen offset:{1024*r} sc1")
    def phiq():
        for rt in range(2):
            for ks in range(4):
                d = vqr + 16*rt + 4*ks
                A(f"ds_read_b128 v[{d}:{d+3}], v{vqa[ks]} offset:{4096*rt}")
        for f in range(8):
            A(f"s_waitcnt lgkmcnt({7-f})")
            phi8(vqr + 4*f, vqr + 4*f)
    pre_e, pre_l = qe != "P2", ql != "P2"
    split = pre_e != pre_l
    assert not (split and pre_l)
    if phi_first and pre_e:
        if split: A(f"s_cmp_eq_u32 s{searly}, 1", "s_cbranch_scc0 L_gat")
        A("s_waitcnt vmcnt(0)")
        if split: A("s_branch L_phi")
        else: phiq()
        A("L_gat:")
    gather()
    stamp(4)
    sq0, sq1 = st0, st1
    if not pre_l:
        if split: A(f"s_cmp_eq_u32 s{searly}, 1", "s_cbranch_scc1 L_noq2")
        for h in range(2):
            A(f"s_add_u32 s{sout}, s{sqlds}, {4096*h}", f"s_mov_b32 m0, s{sout}", f"s_add_u32 s{sout}, s{sqoff}, {4096*h}")
            for i in range(4):
                A(f"buffer_load_dwordx4 v{vq[i]}, s[{sQ}:{sQ+3}], s{sout} offen offset:{1024*i} nt lds")
        A("s_waitcnt vmcnt(8)", "s_branch L_ver")
        A("L_noq2:")
    if pre_e and not phi_first:
        A("s_waitcnt vmcnt(10)")
        if split: A("s_branch L_phi")
        else: phiq()
    A("L_verw:", "s_waitcnt vmcnt(0)")
    A("L_ver:")
    stamp(5)
    A(f"v_max3_u32 v{vt[0]}, v{vg}, v{vg+1}, v{vg+2}", f"v_max3_u32 v{vt[1]}, v{vg+3}, v{vg+4}, v{vg+5}")
    for i in range(6, 40, 2):
        t = vt[(i//2) & 1 ^ 1]
        A(f"v_max3_u32 v{t}, v{vg+i}, v{vg+i+1}, v{t}")
    A(f"v_max_u32 v{vt[0]}, v{vt[0]}, v{vt[1]}", f"v_cmp_eq_u32 vcc, -1, v{vt[0]}", "s_cbranch_vccnz L_retry")
    for rg in range(2):
        for u in range(2):
            for dsl in range(2):
                for h in range(2):
                    a = vg + 8*rg + 4*dsl + 2*u + h; b = a + 16
                    x = vx + 4*(h)
                    A(f"v_lshlrev_b32 v{x}, 16, v{a}", f"v_and_b32 v{x+1}, s{smask}, v{a}",
                      f"v_lshlrev_b32 v{x+2}, 16, v{b}", f"v_and_b32 v{x+3}, s{smask}, v{b}",
                      f"v_add_f32 v{x}, v{x}, v{x+2}", f"v_add_f32 v{x+1}, v{x+1}, v{x+3}",
                      f"v_cvt_pk_bf16_f32 v{vvb+4*(2*rg+u)+2*dsl+h}, v{x}, v{x+1}")
            t = 2*rg + u
            A(f"ds_write_b128 v{vkw}, v[{vvb+4*t}:{vvb+4*t+3}] offset:{32*t}")
    for i in range(4): A(f"v_add_f32 v{vg+32+i}, v{vg+32+i}, v{vg+36+i}")
    A(f"v_cvt_pk_bf16_f32 v{vkr}, v{vg+32}, v{vg+33}", f"v_cvt_pk_bf16_f32 v{vkr+1}, v{vg+34}, v{vg+35}")
    A(f"ds_write_b64 v{vzw}, v[{vkr}:{vkr+1}]")
    A("s_waitcnt lgkmcnt(0)", "s_barrier")
    stamp(6)
    if split:
        A(f"s_cmp_eq_u32 s{searly}, 1", "s_cbranch_scc1 L_mm")
        A("s_waitcnt vmcnt(0)")
        A("L_phi:")
        phiq()
        A(f"s_cmp_eq_u32 s{searly}, 1", f"s_cbranch_scc1 {'L_gat' if phi_first else 'L_verw'}")
    elif not pre_l:
        A("s_waitcnt vmcnt(0)")
        phiq()
    A("L_mm:")
    stamp(7)
    if prio:
        A(f"s_cmp_eq_u32 s{searly}, 1", "s_cbranch_scc0 L_np", "s_setprio 1", "L_np:")
    for ks in range(4): A(f"ds_read_b128 v[{vzb+4*ks}:{vzb+4*ks+3}], v{vzr} offset:{64*ks}")
    seq = [(T, ks) for T in range(8) for ks in range(4)]
    def rd(i):
        T, ks = seq[i]
        A(f"ds_read_b128 v[{vb+4*(i%8)}:{vb+4*(i%8)+3}], v{vbr} offset:{ks*8320 + T*1040}")
    for i in range(6): rd(i)
    A("s_waitcnt lgkmcnt(6)")
    for ks in range(4):
        for rt in range(2):
            c = "0" if ks == 0 else f"v[{vden+4*rt}:{vden+4*rt+3}]"
            a = vqr + 16*rt + 4*ks
            A(f"v_mfma_f32_16x16x32_bf16 v[{vden+4*rt}:{vden+4*rt+3}], v[{a}:{a+3}], v[{vzb+4*ks}:{vzb+4*ks+3}], {c}")
    for i in range(32):
        T, ks = seq[i]
        if i + 6 < 32:
            rd(i + 6); A("s_waitcnt lgkmcnt(6)")
        else:
            A(f"s_waitcnt lgkmcnt({31-i})")
        for rt in range(2):
            d = vn + 32*rt + 4*T
            c = "0" if ks == 0 else f"v[{d}:{d+3}]"
            a = vqr + 16*rt + 4*ks
            A(f"v_mfma_f32_16x16x32_bf16 v[{d}:{d+3}], v[{a}:{a+3}], v[{vb+4*(i%8)}:{vb+4*(i%8)+3}], {c}")
        if 4 <= i < 12: A(f"v_add_f32 v{vden+i-4}, s{seps}, v{vden+i-4}")
        if 5 <= i < 13: A(f"v_rcp_f32 v{vden+i-5}, v{vden+i-5}")
        if i >= 16 and False: pass
    stamp(8)
    A(f"s_add_u32 s{sout}, s{sqoff}, 4096")
    for rt in range(2):
        for r in range(4):
            o = vo2 + 4*((4*rt + r) % 8)
            for T in range(8):
                if rt == 0 and r == 0 and T == 6: A("s_nop 1")
                A(f"v_mul_f32 v{vn+32*rt+4*T+r}, v{vn+32*rt+4*T+r}, v{vden+4*rt+r}")
            for h in range(4):
                A(f"v_cvt_pk_bf16_f32 v{o+h}, v{vn+32*rt+8*h+r}, v{vn+32*rt+8*h+4+r}")
            A(f"buffer_store_dwordx4 v[{o}:{o+3}], v{vo}, s[{sO}:{sO+3}], s{sqoff if rt == 0 else sout} offen offset:{256*r} {outflag}")
    if stamps:
        stamp(9)
        A("s_waitcnt vmcnt(0)")
        stamp(10)
        A("s_waitcnt lgkmcnt(0)")
        A(f"s_and_b32 s{st0}, s{sw}, 3", f"s_cmp_lg_u32 s{st0}, 0", "s_cbranch_scc1 L_end")
        A(f"s_lshl_b32 s{st0}, s2, 8", f"s_lshl_b32 s{st1}, s{sw}, 5", f"s_add_u32 s{st0}, s{st0}, s{st1}", f"s_add_u32 s{st0}, s{st0}, 0x8000000",
          f"s_add_u32 s{sW}, s{sW}, s{st0}", f"s_addc_u32 s{sW+1}, s{sW+1}, 0")
        A(f"s_mul_i32 s{st0}, s{sspin}, 100", f"s_add_u32 s82, s60, s{st0}", "s_addc_u32 s83, s61, 0")
        A("v_mov_b32 v3, 0")
        for i in range(12):
            A(f"v_mov_b32 v4, s{60+2*i}", f"v_mov_b32 v5, s{61+2*i}", f"global_store_dwordx2 v3, v[4:5], s[{sW}:{sW+1}] offset:{8*i}")
    A("L_end:", "s_endpgm")
    A("L_retry:")
    A(f"s_add_u32 s{sspin}, s{sspin}, 1", f"s_cmp_ge_u32 s{sspin}, {spin}", "s_cbranch_scc1 L_end")
    gather()
    A("s_branch L_verw")
    A("L_hs_retry:")
    A(f"s_add_u32 s{sspin}, s{sspin}, 1", f"s_cmp_ge_u32 s{sspin}, {spin}", "s_cbranch_scc1 L_end")
    A(f"s_lshl_b32 s{st0}, s{shead}, 3", f"v_mov_b32 v{vt[0]}, 0")
    A(f"buffer_load_dwordx2 v[{vhs}:{vhs+1}], v{vt[0]}, s[{sD}:{sD+3}], s{st0} offen sc1")
    A("s_waitcnt vmcnt(0)", "s_branch L_hs")
    return wrap(A.text(), 256, 512, 160*1024, vgpr=256, sgpr=102, notes=NOTES)

if __name__ == "__main__":
    open("k1.s", "w").write(gen(stamps=True, spin=20000))
    open("k1f.s", "w").write(gen())
```
